```python
import torch

def _softmax(x, axis=-1):
    return torch.softmax(x, dim=axis)
def _gelu(x):
    return torch.nn.functional.gelu(x, approximate="tanh")
def _silu(x):
    return torch.nn.functional.silu(x)
def _sigmoid(x):
    return torch.sigmoid(x)
def _layernorm(x, axis=-1, eps=1e-5):
    m = x.mean(dim=axis, keepdim=True)
    v = x.var(dim=axis, keepdim=True, unbiased=False)
    return (x - m) / torch.sqrt(v + eps)
def _scatter_add(tgt, idx, src, axis=0):
    return tgt.clone().index_add_(axis, idx, src)
def _segment_sum(src, seg, n):
    out = torch.zeros((n,) + src.shape[1:], dtype=src.dtype)
    return out.index_add_(0, seg, src)
def _pad(x, pw):
    flat = tuple(v for pair in reversed(pw) for v in pair)
    return torch.nn.functional.pad(x, flat)

kernel_name = 'standalone__sequential_behavior_din__recsys'

def setup_inputs():

    _w = (lambda a: (lambda t: t.to(torch.bfloat16) if t.is_floating_point() else t)(torch.as_tensor(a)))
    B, L, D = 1024, 200, 128
    H = D
    return {
        "target": _w((lambda *s: torch.randn(*s, dtype=torch.bfloat16) * 1.6)(B, D)),
        "hist": _w((lambda *s: torch.randn(*s, dtype=torch.bfloat16) * 1.6)(B, L, D)),
        "mask": _w((lambda lo, hi, *s: torch.randint(lo, hi, s))(0, 2, B, L).to(float)),
        "w1": _w((lambda *s: torch.randn(*s, dtype=torch.bfloat16) * 1.6)(4 * D, H) * (4 * D) ** -0.5),
        "b1": _w((lambda *s: torch.randn(*s, dtype=torch.bfloat16) * 1.6)(H) * 0.1),
        "w2": _w((lambda *s: torch.randn(*s, dtype=torch.bfloat16) * 0.05)(H, 1) * H ** -0.5),
        "b2": _w((lambda *s: torch.randn(*s, dtype=torch.bfloat16) * 0.05)(1) * 0.1),
    }

def reference(target, hist, mask, w1, b1, w2, b2):
    L = hist.shape[1]
    tgt = (lambda x, n, axis: torch.repeat_interleave(x, n, dim=axis))(target[:, None, :], L, axis=1)
    feat = torch.concatenate([hist, tgt, hist - tgt, hist * tgt], axis=-1)
    h = _sigmoid(feat @ w1 + b1)
    scores = (h @ w2 + b2)[..., 0] * mask
    return torch.einsum('bl,bld->bd', scores, hist)
```

```python
import sys

KN = "standalone__sequential_behavior_din__recsys_kernel"

class Asm:
    def __init__(self):
        self.lines = []
    def __call__(self, s):
        for l in s.strip("\n").split("\n"):
            self.lines.append("    " + l.strip() if not l.strip().endswith(":") else l.strip())
    def label(self, s):
        self.lines.append(s + ":")
    def text(self):
        return "\n".join(self.lines) + "\n"

def vr(b, n):
    return f"v[{b}:{b+n-1}]"

def gen(stamps=False, nt=False):
    a = Asm()
    SLOT = 8704
    QUAD = 1088
    WBASE = 2 * SLOT
    MISC = WBASE + 131072
    LIST = MISC
    LISTG = 14 * 256
    SBUF = LIST + 2 * LISTG
    CB = SBUF + 5120
    TB = CB + 2048
    LDS_TOTAL = TB + 1024
    assert LDS_TOTAL <= 163840, LDS_TOTAL
    NEGLOG2E = "0xbfb8aa3b"

    WbA = 4; WbB = 36
    cbA = 68; cbB = 84
    W2 = 100
    Bf = 116
    ACC = 148; ACC2 = 164
    Af = 180
    Tf = 184
    OA = 192
    vB0 = [200, 201]; vB1 = [202, 203]
    vT = [[204, 205, 206, 207], [208, 209, 210, 211]]
    vSw = 212; vSr = 213; vLm = 214; vLdma = 215; vHswz = 216; vL31 = 217; vPinit = 218
    vP0 = 219; vP1 = 1; vMp = 2; vTmp = 3
    vD0 = 220; vD1 = 221
    vD2 = 222; vD3 = 223
    S0 = 224
    dA = 240; dB = 248
    M = cbA
    I = cbA + 8
    tv = cbB
    mk = cbB + 8
    Tq = cbB + 12
    cu = W2
    P1 = Af
    P2 = Tf
    b1r = Tf + 4
    b2r = Tf + 6
    w2r = OA
    vWoff = vP0
    vWr = [vB0[1], vB1[1]]
    vGr = [vT[1][0], vT[1][1]]
    vTr = vT[1][2]; vtr = vT[1][3]
    vLane = vD2; vX = vD3; vY = vD0; vZ = vD1
    Fa = Bf; Fc = Bf + 8; Fd = Bf + 16; Gb = Bf + 24; Gc = Bf + 28

    sH = 20; sW = 24
    sV = 28; sG = 29; sWv = 30; sTmp = 31; sTmp2 = 32; sBase = 33; sCntA = 34; sNt = 35; sDense = 36
    sRet = 38
    sLM = 40
    sCm = 56
    sSlotG = 72
    sEx = 74
    sTsrd = 76
    sSt = 80
    nst = [0]
    def stamp():
        if stamps:
            a(f"s_memrealtime s[{sSt+2*nst[0]}:{sSt+2*nst[0]+1}]")
            nst[0] += 1

    NT = " nt" if nt else ""

    stamp()
    a(f"""
    s_cmp_ge_u32 s2, 256
    s_cbranch_scc1 L_exit
    s_load_dwordx16 s[4:19], s[0:1], 0
    v_and_b32 v{vLane}, 63, v0
    v_lshrrev_b32 v{vX}, 6, v0
    s_nop 1
    v_readfirstlane_b32 s{sV}, v{vX}
    v_lshrrev_b32 v{vX}, 4, v{vLane}          ; lane>>4
    v_and_b32 v{vY}, 15, v{vLane}             ; lane&15
    s_nop 1
    s_lshr_b32 s{sG}, s{sV}, 2
    s_and_b32 s{sWv}, s{sV}, 3
    v_xor_b32 v{vHswz}, v{vY}, v{vX}
    v_lshlrev_b32 v{vHswz}, 4, v{vHswz}
    v_lshlrev_b32 v{vZ}, 2, v{vX}
    v_xor_b32 v{vZ}, v{vZ}, v{vY}
    s_and_b32 s{sTmp}, s{sV}, 2
    v_xor_b32 v{vZ}, s{sTmp}, v{vZ}
    v_lshlrev_b32 v{vZ}, 4, v{vZ}
    v_lshl_add_u32 v{vWoff}, v{vX}, 8, v{vZ}
    s_lshl_b32 s{sTmp}, s{sV}, 10
    v_add_u32 v{vWoff}, s{sTmp}, v{vWoff}
    v_lshl_add_u32 v{vTmp}, v{vX}, 8, v{vHswz}
    s_lshl_b32 s{sTmp}, s{sWv}, 11
    v_add_u32 v{vTmp}, s{sTmp}, v{vTmp}
    v_lshlrev_b32 v{vP1}, 3, v{vLane}
    v_lshlrev_b32 v{vMp}, 4, v{vLane}
    s_lshl_b32 s{sTmp}, s2, 2
    s_lshl_b32 s{sTmp2}, s{sG}, 1
    s_add_u32 s{sBase}, s{sTmp}, s{sTmp2}
    s_mul_i32 s{sSlotG}, s{sG}, {SLOT}
    s_waitcnt lgkmcnt(0)
    """)
    stamp()
    a(f"""
    s_mul_i32 s{sTmp}, s{sBase}, 400
    s_add_u32 s8, s8, s{sTmp}
    s_addc_u32 s9, s9, 0
    s_mov_b32 exec_hi, 0x3ffff
    global_load_dwordx2 {vr(mk,2)}, v{vP1}, s[8:9]
    global_load_dwordx2 {vr(mk+2,2)}, v{vP1}, s[8:9] offset:400
    s_mov_b32 exec_hi, -1
    s_mul_i32 s{sTmp}, s{sBase}, 51200
    s_add_u32 s{sH}, s6, s{sTmp}
    s_addc_u32 s{sH+1}, s7, 0
    s_mov_b32 s{sH+2}, 102400
    s_mov_b32 s{sH+3}, 0x20000
    s_mul_i32 s{sTmp}, s{sWv}, {2*QUAD}
    s_add_u32 s{sSlotG}, s{sSlotG}, s{sTmp}
    s_mov_b32 m0, s{sSlotG}
    s_movk_i32 s{sTmp2}, 1024
    buffer_load_dwordx4 v{vTmp}, s[{sH}:{sH+3}], 0 offen{NT} lds
    s_add_u32 m0, s{sSlotG}, {QUAD}
    s_nop 0
    buffer_load_dwordx4 v{vTmp}, s[{sH}:{sH+3}], s{sTmp2} offen{NT} lds
    s_lshl_b32 s{sTmp}, s2, 10
    s_add_u32 s{sTsrd}, s4, s{sTmp}
    s_addc_u32 s{sTsrd+1}, s5, 0
    s_mov_b32 s{sTsrd+2}, 1024
    s_mov_b32 s{sTsrd+3}, 0x20000
    s_mov_b32 m0, {TB}
    s_mov_b32 s{sW}, s10
    buffer_load_dwordx4 v{vMp}, s[{sTsrd}:{sTsrd+3}], 0 offen lds
    s_mov_b32 s{sW+1}, s11
    s_mov_b32 s{sW+2}, 131072
    s_mov_b32 s{sW+3}, 0x20000
    s_lshl_b32 s{sTmp2}, s{sV}, 10
    """)
    for q in range(4):
        for x in range(4):
            a(f"""
            s_add_u32 m0, s{sTmp2}, {WBASE + q*32768 + x*8192}
            s_mov_b32 s{sTmp}, {x*32768 + q*8192}
            buffer_load_dwordx4 v{vWoff}, s[{sW}:{sW+3}], s{sTmp} offen lds
            """)
    a(f"""
    v_lshrrev_b32 v{vZ}, 5, v{vLane}          ; h
    v_lshlrev_b32 v{vZ}, 3, v{vZ}             ; h*8 bytes
    s_lshl_b32 s{sTmp}, s{sWv}, 6
    v_add_u32 v{vZ}, s{sTmp}, v{vZ}
    global_load_dwordx2 {vr(w2r,2)}, v{vZ}, s[14:15]
    global_load_dwordx2 {vr(w2r+2,2)}, v{vZ}, s[14:15] offset:16
    global_load_dwordx2 {vr(w2r+4,2)}, v{vZ}, s[14:15] offset:32
    global_load_dwordx2 {vr(w2r+6,2)}, v{vZ}, s[14:15] offset:48
    v_lshlrev_b32 v{vZ}, 3, v{vX}             ; g'*8 bytes
    s_lshl_b32 s{sTmp}, s{sV}, 5
    v_add_u32 v{vZ}, s{sTmp}, v{vZ}
    v_mov_b32 v{vTmp}, 0
    global_load_dwordx2 {vr(b1r,2)}, v{vZ}, s[12:13]
    global_load_ushort v{b2r}, v{vTmp}, s[16:17]
    """)
    stamp()
    for code in range(8):
        j = code >> 1; b = code & 1
        a(f"s_mov_b32 s{sLM+2*code}, {hex(0x3 << (8*j + 2*b))}")
        a(f"s_mov_b32 s{sLM+2*code+1}, {hex((0x3 << (8*j + 4 + 2*b)) & 0xffffffff)}")
    a(f"""
    v_and_b32 v{vZ}, 1, v{vLane}
    v_lshlrev_b32 v{vZ}, 4, v{vZ}
    v_mov_b32 v{vTmp}, 0xffff
    v_lshlrev_b32 v{vZ}, v{vZ}, v{vTmp}
    """)
    for code in range(8):
        a(f"v_cndmask_b32 v{M+code}, 0, v{vZ}, s[{sLM+2*code}:{sLM+2*code+1}]")
    for code in range(8):
        a(f"v_and_b32 v{I+code}, 0x3f803f80, v{M+code}")
    for i in range(8):
        a(f"v_mov_b32 v{tv+i}, 0")
    a(f"""
    s_mul_i32 s{sTmp}, s{sV}, 896
    s_add_u32 s{sTmp}, s{sTmp}, {LIST}
    v_lshl_add_u32 v{vZ}, v{vLane}, 4, s{sTmp}
    v_mov_b32 v{ACC}, 0x40000000
    v_mov_b32 v{ACC+1}, 0
    v_mov_b32 v{ACC+2}, 0x40000000
    v_mov_b32 v{ACC+3}, 0
    s_mov_b32 exec_hi, 0xffffff
    ds_write_b128 v{vZ}, {vr(ACC,4)}
    s_mov_b32 exec_hi, -1
    """)
    rr = ACC+4; cc = ACC+5; hh = ACC+6; t1 = ACC+7; t2 = ACC+8; t3 = ACC+9
    a(f"""
    v_bfe_u32 v{rr}, v{vLane}, 2, 2
    v_and_b32 v{cc}, 3, v{vLane}
    v_lshrrev_b32 v{hh}, 5, v{vLane}
    v_and_b32 v{t1}, 1, v{vX}
    v_lshlrev_b32 v{t1}, 1, v{t1}
    v_lshrrev_b32 v{t2}, 1, v{cc}
    v_add_u32 v{t1}, v{t1}, v{t2}
    s_lshl_b32 s{sTmp}, s{sWv}, 2
    v_add_u32 v{t1}, s{sTmp}, v{t1}            ; c
    v_lshlrev_b32 v{t3}, 2, v{rr}
    v_xor_b32 v{t1}, v{t1}, v{t3}
    v_lshlrev_b32 v{t3}, 1, v{hh}
    v_xor_b32 v{t1}, v{t1}, v{t3}
    v_lshlrev_b32 v{t1}, 4, v{t1}
    v_lshl_add_u32 v{t3}, v{hh}, 3, v{rr}
    v_lshl_add_u32 v{t1}, v{t3}, 8, v{t1}
    v_and_b32 v{t3}, 1, v{cc}
    v_lshl_add_u32 v{t1}, v{t3}, 3, v{t1}
    v_add_u32 v{vWr[0]}, {WBASE}, v{t1}
    v_add_u32 v{vWr[1]}, {WBASE+65536}, v{t1}
    s_lshl_b32 s{sTmp}, s{sV}, 1
    v_add_u32 v{t1}, s{sTmp}, v{t2}
    v_lshlrev_b32 v{t3}, 2, v{rr}
    v_xor_b32 v{t1}, v{t1}, v{t3}
    v_and_b32 v{t3}, 1, v{vX}
    v_lshlrev_b32 v{t3}, 1, v{t3}
    v_xor_b32 v{t1}, v{t1}, v{t3}
    v_lshlrev_b32 v{t1}, 4, v{t1}
    v_lshl_add_u32 v{t3}, v{vX}, 3, v{rr}
    v_lshl_add_u32 v{t1}, v{t3}, 8, v{t1}
    v_and_b32 v{t3}, 1, v{cc}
    v_lshl_add_u32 v{t1}, v{t3}, 3, v{t1}
    v_add_u32 v{vGr[0]}, {WBASE}, v{t1}
    v_add_u32 v{vGr[1]}, {WBASE+65536}, v{t1}
    v_lshlrev_b32 v{t1}, 8, v{cc}
    v_lshl_add_u32 v{t1}, v{vX}, 4, v{t1}
    v_add_u32 v{vTr}, {TB}, v{t1}
    v_and_b32 v{t1}, 0x13, v{vLane}
    v_bfe_u32 v{t3}, v{vLane}, 2, 1           ; h'
    v_lshl_add_u32 v{t1}, v{t3}, 3, v{t1}
    v_bfe_u32 v{t3}, v{vLane}, 3, 1           ; j&1
    v_lshl_add_u32 v{t1}, v{t3}, 2, v{t1}
    s_lshl_b32 s{sTmp}, s{sG}, 9
    s_add_u32 s{sTmp}, s{sTmp}, {TB}
    v_lshl_add_u32 v{vtr}, v{t1}, 1, s{sTmp}
    ; vL31
    v_and_b32 v{vL31}, 31, v{vLane}
    s_mul_i32 s{sTmp2}, s{sG}, {SLOT}
    v_lshrrev_b32 v{t1}, 2, v{vL31}
    v_mul_u32_u24 v{t1}, {QUAD}, v{t1}
    v_lshl_add_u32 v{t1}, v{cc}, 8, v{t1}
    v_xor_b32 v{t3}, v{hh}, v{cc}
    v_lshl_add_u32 v{t1}, v{t3}, 4, v{t1}
    v_add_u32 v{vB0[0]}, s{sTmp2}, v{t1}
    v_xor_b32 v{vB1[0]}, 32, v{vB0[0]}
    v_lshrrev_b32 v{t1}, 1, v{rr}
    v_lshl_add_u32 v{t1}, v{vX}, 1, v{t1}
    v_mul_u32_u24 v{t1}, {QUAD}, v{t1}
    v_and_b32 v{t3}, 1, v{rr}
    v_lshl_add_u32 v{t1}, v{t3}, 9, v{t1}
    v_lshlrev_b32 v{t3}, 1, v{t3}
    v_xor_b32 v{t3}, v{t3}, v{t2}
    v_lshl_add_u32 v{t1}, v{t3}, 4, v{t1}
    v_and_b32 v{t3}, 1, v{cc}
    v_lshl_add_u32 v{t1}, v{t3}, 3, v{t1}
    s_lshl_b32 s{sTmp}, s{sWv}, 6
    s_add_u32 s{sTmp}, s{sTmp}, s{sTmp2}
    v_add_u32 v{vT[0][0]}, s{sTmp}, v{t1}
    v_xor_b32 v{vT[0][1]}, 16, v{vT[0][0]}
    v_xor_b32 v{vT[0][2]}, 32, v{vT[0][0]}
    v_xor_b32 v{vT[0][3]}, 48, v{vT[0][0]}
    v_and_b32 v{t1}, 24, v{vLane}
    v_bfe_u32 v{t3}, v{vLane}, 1, 2
    v_add_u32 v{t1}, v{t1}, v{t3}
    v_and_b32 v{t3}, 1, v{vLane}
    v_lshl_add_u32 v{t1}, v{t3}, 2, v{t1}
    v_lshlrev_b32 v{t1}, 1, v{t1}
    v_mul_u32_u24 v{t3}, 80, v{hh}
    v_add_u32 v{t1}, v{t1}, v{t3}
    s_mul_i32 s{sTmp}, s{sG}, 2560
    s_add_u32 s{sTmp}, s{sTmp}, {SBUF}
    s_mul_i32 s{sTmp2}, s{sWv}, 160
    s_add_u32 s{sTmp2}, s{sTmp2}, s{sTmp}
    v_add_u32 v{vSw}, s{sTmp2}, v{t1}
    v_mul_u32_u24 v{t1}, 80, v{vY}
    v_lshl_add_u32 v{t1}, v{vX}, 4, v{t1}
    v_add_u32 v{vSr}, s{sTmp}, v{t1}
    s_mul_i32 s{sBase}, s{sG}, {LISTG}
    s_add_u32 s{sBase}, s{sBase}, {LIST}
    v_lshl_add_u32 v{vLm}, v{vL31}, 3, s{sBase}
    s_lshl_b32 s{sTmp}, s{sWv}, 6
    s_add_u32 s{sTmp}, s{sTmp}, s{sBase}
    v_lshl_add_u32 v{vLdma}, v{vX}, 3, s{sTmp}
    """)
    vL1024 = ACC2; vL32 = ACC2 + 1; vCbw = vPinit
    a(f"""
    v_lshlrev_b32 v{vL1024}, 10, v{vLane}
    v_lshl_add_u32 v{vL32}, v{vLane}, 5, s{sBase}
    v_lshlrev_b32 v{t1}, 9, v{vY}
    v_lshl_add_u32 v{t1}, v{vX}, 4, v{t1}
    s_lshl_b32 s{sTmp}, s{sV}, 6
    s_add_u32 s{sTmp}, s{sTmp}, {CB}
    v_add_u32 v{vCbw}, s{sTmp}, v{t1}
    """)

    def dma_tiles(tiles):
        regs = [vD0, vD1, vD2, vD3]
        assert len(tiles) <= 2
        for ti, t in enumerate(tiles):
            tl = min(t, 13)
            a(f"ds_read_b32 v{regs[2*ti]}, v{vLdma} offset:{tl*256}")
            a(f"ds_read_b32 v{regs[2*ti+1]}, v{vLdma} offset:{tl*256+32}")
        return regs
    def dma_issue(tiles, regs):
        for ti, t in enumerate(tiles):
            for i in range(2):
                r = regs[2*ti+i]
                a(f"v_add_u32 v{r}, v{r}, v{vHswz}")
        for ti, t in enumerate(tiles):
            for i in range(2):
                r = regs[2*ti+i]
                a(f"s_add_u32 m0, s{sSlotG}, {(t % 8) * 2 * SLOT + i * QUAD}")
                a("s_nop 0")
                a(f"buffer_load_dwordx4 v{r}, s[{sH}:{sH+3}], 0 offen{NT} lds")

    waits = [18, 14, 12, 12]
    tiles_after = {1: [1], 2: [2, 3], 3: [4, 5]}
    for q in range(4):
        a(f"s_waitcnt vmcnt({waits[q]}) lgkmcnt(0)")
        a("s_barrier")
        if q in (0, 3):
            stamp()
        regs = None
        if q in tiles_after:
            regs = dma_tiles(tiles_after[q])
            a("s_waitcnt lgkmcnt(0)")
            dma_issue(tiles_after[q], regs)
        wr = vWr[q >> 1]; gr = vGr[q >> 1]; qo = (q & 1) * 32768
        if q == 0:
            for X in range(2):
                for qq in range(4):
                    a(f"ds_read_u16_d16_hi v{tv+4*X+qq}, v{vtr} offset:{X*256+qq*64}")
            a("s_waitcnt lgkmcnt(0)")
            for i in range(8):
                a(f"v_mul_f32 v{tv+i}, {NEGLOG2E}, v{tv+i}")
            for i in range(8):
                a(f"v_cvt_pk_bf16_f32 v{tv+i}, v{tv+i}, v{tv+i}")
        a(f"ds_read_b128 {vr(Tq,4)}, v{vTr} offset:{q*64}")
        for (F, x) in ((Gb, 1), (Gc, 2)):
            for e in range(2):
                a(f"ds_read_b64_tr_b16 {vr(F+2*e,2)}, v{gr} offset:{qo + x*8192 + e*1024}")
        for (F, x) in ((Fa, 0), (Fc, 2)):
            for f in range(2):
                for e in range(2):
                    a(f"ds_read_b64_tr_b16 {vr(F+4*f+2*e,2)}, v{wr} offset:{qo + x*8192 + f*4096 + e*1024}")
        for code in range(8):
            a(f"v_and_b32 v{dA+code}, v{tv+q}, v{M+code}")
        a("s_waitcnt lgkmcnt(8)")
        for f in range(2):
            for e in range(2):
                a(f"ds_read_b64_tr_b16 {vr(Fd+4*f+2*e,2)}, v{wr} offset:{qo + 3*8192 + f*4096 + e*1024}")
        c1 = "0" if q == 0 else vr(P1, 4)
        c2 = "0" if q == 0 else vr(P2, 4)
        a(f"v_mfma_f32_16x16x32_bf16 {vr(P1,4)}, {vr(Gb,4)}, {vr(Tq,4)}, {c1}")
        a(f"v_mfma_f32_16x16x32_bf16 {vr(P2,4)}, {vr(Gc,4)}, {vr(Tq,4)}, {c2}")
        a("s_waitcnt lgkmcnt(10)")
        a(f"v_mfma_f32_32x32x16_bf16 {vr(S0,16)}, {vr(I,4)}, {vr(Fa,4)}, 0")
        a("s_waitcnt lgkmcnt(8)")
        a(f"v_mfma_f32_32x32x16_bf16 {vr(S0,16)}, {vr(I+4,4)}, {vr(Fa+4,4)}, {vr(S0,16)}")
        a("s_waitcnt lgkmcnt(6)")
        a(f"v_mfma_f32_32x32x16_bf16 {vr(S0,16)}, {vr(I,4)}, {vr(Fc,4)}, {vr(S0,16)}")
        a("s_waitcnt lgkmcnt(4)")
        a(f"v_mfma_f32_32x32x16_bf16 {vr(S0,16)}, {vr(I+4,4)}, {vr(Fc+4,4)}, {vr(S0,16)}")
        for code in range(8):
            a(f"v_and_b32 v{dB+code}, v{tv+4+q}, v{M+code}")
        if q == 0:
            a("s_mov_b32 exec_hi, 0x3ffff")
            for X in range(2):
                for j in range(4):
                    k = 4*X + j
                    src = mk + 2*X + (j >> 1)
                    dst = cu + 2*k + 1
                    if X == 0:
                        a(f"v_and_b32 v{dst}, 0xffff, v{src}" if j % 2 == 0 else f"v_lshrrev_b32 v{dst}, 16, v{src}")
                        a(f"v_cmp_neq_f16 s[{sCm+2*k}:{sCm+2*k+1}], 0, v{dst}")
                    else:
                        a(f"v_lshlrev_b32 v{dst}, 16, v{src}" if j % 2 == 0 else f"v_and_b32 v{dst}, 0xffff0000, v{src}")
                        a(f"v_cmp_neq_f32 s[{sCm+2*k}:{sCm+2*k+1}], 0, v{dst}")
                    a(f"v_add_u32 v{dst-1}, {(X*200 + j)*256}, v{vL1024}")
            a("s_mov_b64 exec, 0xff")
            for j in range(4):
                a(f"ds_write_b64 v{vL32}, {vr(cu+2*j,2)} offset:{8*j}")
            a(f"s_add_u32 s{sTmp2}, s{sBase}, 256")
            for k in range(8):
                if k < 4:
                    a(f"s_andn2_b64 s[{sCm+2*k}:{sCm+2*k+1}], s[{sCm+2*k}:{sCm+2*k+1}], 0xff")
                a(f"s_mov_b64 exec, s[{sCm+2*k}:{sCm+2*k+1}]")
                a(f"v_mbcnt_lo_u32_b32 v{vD0}, s{sCm+2*k}, 0")
                a(f"v_mbcnt_hi_u32_b32 v{vD0}, s{sCm+2*k+1}, v{vD0}")
                a(f"v_lshl_add_u32 v{vD0}, v{vD0}, 3, s{sTmp2}")
                a(f"ds_write_b64 v{vD0}, {vr(cu+2*k,2)}")
                a(f"s_bcnt1_i32_b64 s{sTmp}, s[{sCm+2*k}:{sCm+2*k+1}]")
                a(f"s_lshl_b32 s{sTmp}, s{sTmp}, 3")
                a(f"s_add_u32 s{sTmp2}, s{sTmp2}, s{sTmp}")
                if k == 3:
                    a(f"s_sub_u32 s{sCntA}, s{sTmp2}, s{sBase}")
                    a(f"s_lshr_b32 s{sCntA}, s{sCntA}, 3")
            a(f"""
            s_mov_b64 exec, -1
            s_sub_u32 s{sNt}, s{sTmp2}, s{sBase}
            s_add_u32 s{sNt}, s{sNt}, 255
            s_lshr_b32 s{sNt}, s{sNt}, 8
            s_cmp_gt_u32 s{sNt}, 8
            s_cselect_b32 s{sDense}, 1, 0
            s_nop 3
            """)
        else:
            a("s_nop 4")
        if q == 3:
            a("s_waitcnt vmcnt(10)")
            a(f"""
            v_lshlrev_b32 v{vD0}, 16, v{b1r}
            v_and_b32 v{vD1}, 0xffff0000, v{b1r}
            v_lshlrev_b32 v{vD2}, 16, v{b1r+1}
            v_and_b32 v{vD3}, 0xffff0000, v{b1r+1}
            """)
            for i in range(4):
                a(f"v_sub_f32 v{P1+i}, v{P1+i}, v{P2+i}")
            for i in range(4):
                a(f"v_add_f32 v{P1+i}, v{P1+i}, v{vD0+i}")
            for i in range(4):
                a(f"v_mul_f32 v{P1+i}, {NEGLOG2E}, v{P1+i}")
            a(f"""
            s_mov_b32 exec_lo, 0x000f000f
            s_mov_b32 exec_hi, 0x000f000f
            ds_write_b128 v{vCbw}, {vr(P1,4)}
            s_mov_b64 exec, -1
            """)
        for i in range(16):
            a(f"v_mul_f32 v{S0+i}, {NEGLOG2E}, v{S0+i}")
        a("s_waitcnt lgkmcnt(0)")
        if q == 3:
            a("s_barrier")
            stamp()
            regs = dma_tiles([6, 7])
        a("s_nop 0")
        a(f"v_mfma_f32_32x32x16_bf16 {vr(ACC,16)}, {vr(dA,4)}, {vr(Fd,4)}, {vr(S0,16)}")
        a(f"v_mfma_f32_32x32x16_bf16 {vr(ACC,16)}, {vr(dA+4,4)}, {vr(Fd+4,4)}, {vr(ACC,16)}")
        a(f"v_mfma_f32_32x32x16_bf16 {vr(ACC2,16)}, {vr(dB,4)}, {vr(Fd,4)}, {vr(S0,16)}")
        a(f"v_mfma_f32_32x32x16_bf16 {vr(ACC2,16)}, {vr(dB+4,4)}, {vr(Fd+4,4)}, {vr(ACC2,16)}")
        if q == 3:
            a("s_waitcnt lgkmcnt(0)")
            dma_issue([6, 7], regs)
            a(f"""
            v_lshrrev_b32 v{vD0}, 5, v0
            v_and_b32 v{vD0}, 1, v{vD0}
            v_lshlrev_b32 v{vD0}, 4, v{vD0}
            s_lshl_b32 s{sTmp}, s{sG}, 10
            s_lshl_b32 s{sTmp2}, s{sWv}, 7
            s_add_u32 s{sTmp}, s{sTmp}, s{sTmp2}
            s_add_u32 s{sTmp}, s{sTmp}, {CB}
            v_add_u32 v{vD0}, s{sTmp}, v{vD0}
            """)
            for X, cb in ((0, cbA), (1, cbB)):
                for j in range(4):
                    a(f"ds_read_b128 {vr(cb+4*j,4)}, v{vD0} offset:{X*512 + j*32}")
            for j in range(4):
                a(f"v_lshlrev_b32 v{W2+4*j}, 16, v{w2r+2*j}")
                a(f"v_and_b32 v{W2+4*j+1}, 0xffff0000, v{w2r+2*j}")
                a(f"v_lshlrev_b32 v{W2+4*j+2}, 16, v{w2r+2*j+1}")
                a(f"v_and_b32 v{W2+4*j+3}, 0xffff0000, v{w2r+2*j+1}")
            a(f"""
            v_lshlrev_b32 v{vPinit}, 16, v{b2r}
            s_cmp_eq_u32 s{sWv}, 0
            s_cselect_b32 s{sEx}, -1, 0
            s_mov_b32 s{sEx+1}, 0
            v_cndmask_b32 v{vPinit}, 0, v{vPinit}, s[{sEx}:{sEx+1}]
            """)
            a(f"v_add_u32 v{vB0[1]}, {8*SLOT}, v{vB0[0]}")
            a(f"v_add_u32 v{vB1[1]}, {8*SLOT}, v{vB1[0]}")
            for i in range(4):
                a(f"v_add_u32 v{vT[1][i]}, {8*SLOT}, v{vT[0][i]}")
            for i in range(8):
                a(f"v_mov_b32 v{OA+i}, 0")
        else:
            a("s_nop 9")
        for i in range(8):
            a(f"v_cvt_pk_bf16_f32 v{WbA+8*q+i}, v{ACC+2*i}, v{ACC+2*i+1}")
        a("s_nop 3")
        for i in range(8):
            a(f"v_cvt_pk_bf16_f32 v{WbB+8*q+i}, v{ACC2+2*i}, v{ACC2+2*i+1}")
    a("s_waitcnt lgkmcnt(0)")
    stamp()

    def chain(acc, W, cb, waits=True):
        for ks in range(8):
            if waits:
                a(f"s_waitcnt lgkmcnt({NOUT[0] - 1 - ks})")
            c = vr(cb, 16) if ks == 0 else vr(acc, 16)
            a(f"v_mfma_f32_32x32x16_bf16 {vr(acc,16)}, {vr(W+4*ks,4)}, {vr(Bf+4*ks,4)}, {c}")
    NOUT = [0]
    ool = []
    for k in range(14):
        st = (k % 8) >> 2; so = (k % 4) * 2 * SLOT
        pst = ((k-1) % 8) >> 2; pso = ((k-1) % 4) * 2 * SLOT
        if k >= 1:
            Ns = 2 * max(7 - k, 0); Nd = 2 * max(7 - k, 5)
            if k >= 2:
                a(f"s_cmp_lg_u32 s{sDense}, 0")
                a(f"s_cbranch_scc1 L_dense{k}")
                ool.append(("dense", k, Nd))
            a(f"s_waitcnt vmcnt({Ns}) lgkmcnt(0)")
            a("s_barrier")
            a.label(f"L_ret{k}")
            a(f"s_cmp_eq_u32 s{sNt}, {k}")
            a(f"s_cbranch_scc1 L_fin{k % 8}")
        if k == 13:
            a("s_endpgm")
            break
        for ks in range(8):
            base = vB0[st] if ks % 2 == 0 else vB1[st]
            a(f"ds_read_b128 {vr(Bf+4*ks,4)}, v{base} offset:{so + (ks>>1)*64}")
        a(f"ds_read_b32 v{vMp}, v{vLm} offset:{k*256+4}")
        n = 9
        if k >= 1:
            a(f"ds_read_b128 {vr(Af,4)}, v{vSr} offset:{((k-1)&1)*1280}")
            for dt in range(2):
                for e in range(2):
                    a(f"ds_read_b64_tr_b16 {vr(Tf+4*dt+2*e,2)}, v{vT[pst][e+2*dt]} offset:{pso + 256*e}")
            n = 14
        NOUT[0] = n
        if k <= 2:
            if k > 0:
                a(f"s_cmp_lt_u32 s{sCntA}, {32*(k+1)}")
                a(f"s_cbranch_scc1 L_gen{k}")
                ool.append(("gen", k, None))
            chain(ACC, WbA, cbA)
        elif k == 3:
            a(f"s_sub_i32 s{sTmp}, s{sCntA}, {32*k}")
            chain(ACC, WbA, cbA)
            chain(ACC2, WbB, cbB, waits=False)
            a(f"v_cmp_le_i32 vcc, s{sTmp}, v{vL31}")
            a("s_nop 11")
            for i in range(16):
                a(f"v_cndmask_b32 v{ACC+i}, v{ACC+i}, v{ACC2+i}, vcc")
        else:
            a(f"s_cmp_gt_u32 s{sCntA}, {32*k}")
            a(f"s_cbranch_scc1 L_gen{k}")
            ool.append(("gen", k, None))
            chain(ACC, WbB, cbB)
        a.label(f"L_genret{k}")
        a("s_waitcnt lgkmcnt(0)")
        if k >= 1:
            a(f"v_mfma_f32_16x16x32_bf16 {vr(OA,4)}, {vr(Af,4)}, {vr(Tf,4)}, {vr(OA,4)}")
            a(f"v_mfma_f32_16x16x32_bf16 {vr(OA+4,4)}, {vr(Af,4)}, {vr(Tf+4,4)}, {vr(OA+4,4)}")
        a(f"v_lshlrev_b32 v{vTmp}, 16, v{vMp}")
        a(f"v_and_b32 v{vMp}, 0xffff0000, v{vMp}")
        a("s_nop 8")
        for i in range(16):
            a(f"v_exp_f32 v{ACC+i}, v{ACC+i}")
        for i in range(16):
            a(f"v_add_f32 v{ACC+i}, 1.0, v{ACC+i}")
        for i in range(16):
            a(f"v_rcp_f32 v{ACC+i}, v{ACC+i}")
        a(f"v_fma_f32 v{vP0}, v{ACC}, v{W2}, v{vPinit}")
        a(f"v_mul_f32 v{vP1}, v{ACC+1}, v{W2+1}")
        for i in range(2, 16):
            p = vP0 if i % 2 == 0 else vP1
            a(f"v_fmac_f32 v{p}, v{ACC+i}, v{W2+i}")
        a(f"""
        v_add_f32 v{vP0}, v{vP0}, v{vP1}
        v_mul_f32 v{vTmp}, v{vP0}, v{vTmp}
        v_mul_f32 v{vMp}, v{vP0}, v{vMp}
        v_cvt_pk_bf16_f32 v{vTmp}, v{vTmp}, v{vMp}
        ds_write_b16 v{vSw}, v{vTmp} offset:{(k&1)*1280}
        ds_write_b16_d16_hi v{vSw}, v{vTmp} offset:{(k&1)*1280+640}
        """)
    for r in range(8):
        a.label(f"L_fin{r}")
        km1 = (r - 1) % 8
        pst = km1 >> 2; pso = (km1 % 4) * 2 * SLOT
        a(f"ds_read_b128 {vr(Af,4)}, v{vSr} offset:{(km1&1)*1280}")
        for dt in range(2):
            for e in range(2):
                a(f"ds_read_b64_tr_b16 {vr(Tf+4*dt+2*e,2)}, v{vT[pst][e+2*dt]} offset:{pso + 256*e}")
        if r != 7:
            a("s_branch L_epi")
    a.label("L_epi")
    a(f"""
    v_bfe_u32 v{vD0}, v0, 5, 1
    v_lshlrev_b32 v{vD0}, 8, v{vD0}
    v_lshl_add_u32 v{vD0}, v{vL31}, 1, v{vD0}
    s_lshl_b32 s{sTmp}, s2, 10
    s_lshl_b32 s{sTmp2}, s{sG}, 9
    s_add_u32 s{sTmp}, s{sTmp}, s{sTmp2}
    s_lshl_b32 s{sTmp2}, s{sWv}, 6
    s_add_u32 s{sTmp}, s{sTmp}, s{sTmp2}
    v_add_u32 v{vD0}, s{sTmp}, v{vD0}
    s_waitcnt lgkmcnt(0)
    v_mfma_f32_16x16x32_bf16 {vr(OA,4)}, {vr(Af,4)}, {vr(Tf,4)}, {vr(OA,4)}
    v_mfma_f32_16x16x32_bf16 {vr(OA+4,4)}, {vr(Af,4)}, {vr(Tf+4,4)}, {vr(OA+4,4)}
    s_nop 7
    v_add_f32 v{OA}, v{OA}, v{OA+1}
    v_add_f32 v{OA+2}, v{OA+2}, v{OA+3}
    v_add_f32 v{OA+4}, v{OA+4}, v{OA+5}
    v_add_f32 v{OA+6}, v{OA+6}, v{OA+7}
    v_add_f32 v{OA}, v{OA}, v{OA+2}
    v_add_f32 v{OA+4}, v{OA+4}, v{OA+6}
    s_nop 1
    v_permlane16_swap_b32 v{OA}, v{OA+4}
    s_nop 1
    v_add_f32 v{OA}, v{OA}, v{OA+4}
    v_cvt_pk_bf16_f32 v{OA}, v{OA}, v{OA}
    global_store_short v{vD0}, v{OA}, s[18:19]
    """)
    if stamps:
        stamp()
        a(f"""
        s_waitcnt vmcnt(0)
        """)
        stamp()
        a(f"""
        s_load_dwordx2 s[4:5], s[0:1], 72
        s_waitcnt lgkmcnt(0)
        s_cmp_lg_u32 s{sWv}, 0
        s_cbranch_scc1 L_exit
        s_lshl_b32 s{sTmp}, s2, 8
        s_lshl_b32 s{sTmp2}, s{sG}, 7
        s_add_u32 s{sTmp}, s{sTmp}, s{sTmp2}
        v_mov_b32 v{vD0}, s{sTmp}
        s_mov_b64 exec, 1
        """)
        for i in range(nst[0]):
            a(f"v_mov_b32 v{ACC}, s{sSt+2*i}")
            a(f"v_mov_b32 v{ACC+1}, s{sSt+2*i+1}")
            a(f"global_store_dwordx2 v{vD0}, {vr(ACC,2)}, s[4:5] offset:{8*i}")
            a("s_nop 1")
    a.label("L_exit")
    a("s_endpgm")
    for kind, k, arg in ool:
        if kind == "dense":
            a.label(f"L_dense{k}")
            a(f"s_waitcnt vmcnt({arg}) lgkmcnt(0)")
            a("s_barrier")
            regs = dma_tiles([k + 6])
            a("s_waitcnt lgkmcnt(0)")
            dma_issue([k + 6], regs)
            a(f"s_branch L_ret{k}")
        else:
            a.label(f"L_gen{k}")
            a(f"s_sub_i32 s{sTmp}, s{sCntA}, {32*k}")
            a(f"s_call_b64 s[{sRet}:{sRet+1}], L_gensub")
            a(f"s_branch L_genret{k}")
    a.label("L_gensub")
    a("s_waitcnt lgkmcnt(0)")
    chain(ACC, WbA, cbA, waits=False)
    chain(ACC2, WbB, cbB, waits=False)
    a(f"v_cmp_le_i32 vcc, s{sTmp}, v{vL31}")
    a("s_nop 11")
    for i in range(16):
        a(f"v_cndmask_b32 v{ACC+i}, v{ACC+i}, v{ACC2+i}, vcc")
    a(f"s_setpc_b64 s[{sRet}:{sRet+1}]")

    hdr = open("standalone__sequential_behavior_din__recsys.s.ref").read().split("; @launch")[0]
    out = hdr + f"; @launch grid=(256,1,1) block=(512,1,1) lds={LDS_TOTAL}\n"
    out += f""".amdgcn_target "amdgcn-amd-amdhsa--gfx950"
.text
.globl {KN}
.p2align 8
.type {KN},@function
{KN}:
"""
    out += a.text()
    out += f""".section .rodata,"a"
.p2align 6
.amdhsa_kernel {KN}
  .amdhsa_next_free_vgpr 256
  .amdhsa_next_free_sgpr 102
  .amdhsa_accum_offset 256
  .amdhsa_group_segment_fixed_size 0
  .amdhsa_kernarg_size 80
  .amdhsa_user_sgpr_count 2
  .amdhsa_user_sgpr_kernarg_segment_ptr 1
  .amdhsa_system_sgpr_workgroup_id_x 1
.end_amdhsa_kernel
"""
    return out, nst[0]

if __name__ == "__main__":
    o, n = gen(stamps=False)
    open("v1.s", "w").write(o)
    o, n = gen(stamps=True)
    open("v1_st.s", "w").write(o)
    print("stamps", n)
```
